```python
import torch

def _softmax(x, axis=-1):
    return torch.softmax(x, dim=axis)
def _gelu(x):
    return torch.nn.functional.gelu(x, approximate="tanh")
def _silu(x):
    return torch.nn.functional.silu(x)
def _sigmoid(x):
    return torch.sigmoid(x)
def _layernorm(x, axis=-1, eps=1e-5):
    m = x.mean(dim=axis, keepdim=True)
    v = x.var(dim=axis, keepdim=True, unbiased=False)
    return (x - m) / torch.sqrt(v + eps)
def _scatter_add(tgt, idx, src, axis=0):
    return tgt.clone().index_add_(axis, idx, src)
def _segment_sum(src, seg, n):
    out = torch.zeros((n,) + src.shape[1:], dtype=src.dtype)
    return out.index_add_(0, seg, src)
def _pad(x, pw):
    flat = tuple(v for pair in reversed(pw) for v in pair)
    return torch.nn.functional.pad(x, flat)

kernel_name = 'interleave_layers__linear_kernel_hedgehog__mixer_channel_mlp__prompt'

def setup_inputs():

    _w = (lambda a: (lambda t: t.to(torch.bfloat16) if t.is_floating_point() else t)(torch.as_tensor(a)))
    def _A_setup():
        B, S, D, H = 1, 2048, 512, 32
        Dh = D // H
        return {
            "x": _w((lambda *s: torch.randn(*s, dtype=torch.bfloat16) * 0.05)(B, S, D)),
            "wqkv": _w((lambda *s: torch.randn(*s, dtype=torch.bfloat16) * 0.4)(D, 3 * D)),
            "w_phi": _w((lambda *s: torch.randn(*s, dtype=torch.bfloat16) * 0.4)(H, Dh, Dh) * (Dh ** -0.5)),
            "wo": _w((lambda *s: torch.randn(*s, dtype=torch.bfloat16) * 0.05)(D, D)),
        }
    _A_in = _A_setup()

    def _B_setup():
        B, S, D, F = 1, 2048, 512, 1792
        return {
            "x": _w((lambda *s: torch.randn(*s, dtype=torch.bfloat16) * 0.05)(B, S, D)),
            "w1": _w((lambda *s: torch.randn(*s, dtype=torch.bfloat16) * 3.2)(D, F) * (D ** -0.5)),
            "b1": _w((lambda *s: torch.randn(*s, dtype=torch.bfloat16) * 0.8)(F)),
            "w2": _w((lambda *s: torch.randn(*s, dtype=torch.bfloat16) * 0.8)(F, D) * (F ** -0.5)),
            "b2": _w((lambda *s: torch.randn(*s, dtype=torch.bfloat16) * 0.8)(D)),
        }
    _B_in = _B_setup()

    return {
        "A_x": _A_in["x"],
        "A_wqkv": _A_in["wqkv"],
        "A_w_phi": _A_in["w_phi"],
        "A_wo": _A_in["wo"],
        "B_x": _B_in["x"],
        "B_w1": _B_in["w1"],
        "B_b1": _B_in["b1"],
        "B_w2": _B_in["w2"],
        "B_b2": _B_in["b2"],
    }

def reference(A_x, A_wqkv, A_w_phi, A_wo, B_x, B_w1, B_b1, B_w2, B_b2):
    def _A_ref(x, wqkv, w_phi, wo):
        B, S, D = x.shape
        H = 32; Dh = D // H
        qkv = (lambda x, *d: x.permute(*d))((x @ wqkv).reshape(B, S, 3, H, Dh), 2, 0, 3, 1, 4)
        q, k, v = qkv[0], qkv[1], qkv[2]
        pq = torch.einsum("bhsd,hdf->bhsf", q, w_phi)
        pk = torch.einsum("bhsd,hdf->bhsf", k, w_phi)
        phi_q = torch.concatenate([_softmax(pq, axis=-1), _softmax(-pq, axis=-1)], axis=-1)
        phi_k = torch.concatenate([_softmax(pk, axis=-1), _softmax(-pk, axis=-1)], axis=-1)
        kv = torch.einsum("bhsf,bhsd->bhfd", phi_k, v)
        z  = torch.einsum("bhsf->bhf", phi_k)
        num = torch.einsum("bhqf,bhfd->bhqd", phi_q, kv)
        den = torch.einsum("bhqf,bhf->bhq", phi_q, z)[..., None] + 1e-6
        o = num / den
        return (lambda x, *d: x.permute(*d))(o, 0, 2, 1, 3).reshape(B, S, D) @ wo

    def _B_ref(x, w1, b1, w2, b2):
        y = _layernorm(x, axis=-1)
        h = _gelu(torch.einsum("bsd,df->bsf", y, w1) + b1)
        return torch.einsum("bsf,fd->bsd", h, w2) + b2

    x = A_x
    x = x + _A_ref(_layernorm(x, axis=-1), A_wqkv, A_w_phi, A_wo)
    x = x + _B_ref(_layernorm(x, axis=-1), B_w1, B_b1, B_w2, B_b2)
    x = x + _A_ref(_layernorm(x, axis=-1), A_wqkv, A_w_phi, A_wo)
    x = x + _B_ref(_layernorm(x, axis=-1), B_w1, B_b1, B_w2, B_b2)
    return x
```

```python
import re

_REG_RE = re.compile(r"\b([vas])(?:\[(\d+):(\d+)\]|(\d+))(?![\w])")

TRANS = ("v_exp_f32", "v_log_f32", "v_rcp_f32", "v_rsq_f32", "v_sqrt_f32", "v_sin_f32", "v_cos_f32")


def regs_of(tok):
    out = []
    for m in _REG_RE.finditer(tok):
        k = m.group(1)
        if m.group(2) is not None:
            out += [(k, i) for i in range(int(m.group(2)), int(m.group(3)) + 1)]
        else:
            out.append((k, int(m.group(4))))
    if re.search(r"\bvcc\b", tok):
        out.append(("vcc", 0))
    if re.search(r"\bexec\b", tok):
        out.append(("exec", 0))
    if re.search(r"\bm0\b", tok):
        out.append(("m0", 0))
    return out


def split_ops(s):
    ops, depth, cur = [], 0, ""
    for ch in s:
        if ch in "[(":
            depth += 1
        elif ch in "])":
            depth -= 1
        if ch == "," and depth == 0:
            ops.append(cur.strip())
            cur = ""
        else:
            cur += ch
    if cur.strip():
        ops.append(cur.strip())
    return ops


class Ins:
    __slots__ = ("text", "op", "cls", "w", "r", "srcC", "srcAB", "passes", "states", "store_data", "lds_dma")


def classify(text):
    t = text.strip()
    sp = t.split(None, 1)
    op = sp[0]
    rest = sp[1] if len(sp) > 1 else ""
    ops = split_ops(rest)
    I = Ins()
    I.text, I.op = t, op
    I.w, I.r, I.srcC, I.srcAB, I.passes, I.states = [], [], [], [], 0, 1
    I.store_data, I.lds_dma = [], False
    R = [regs_of(o) for o in ops]
    flat = lambda L: [x for l in L for x in l]
    if op == "s_nop":
        I.cls = "nop"
        I.states = int(ops[0], 0) + 1
    elif op.startswith("v_mfma"):
        I.cls = "mfma"
        I.passes = 8 if "32x32" in op else 4
        I.w = R[0]
        I.srcAB = R[1] + R[2]
        I.srcC = R[3] if len(R) > 3 else []
        I.r = I.srcAB + I.srcC
    elif op.startswith("v_cmp"):
        I.cls = "valu"
        I.w = R[0]
        I.r = flat(R[1:])
    elif op.startswith("v_permlane") and "swap" in op:
        I.cls = "valu"
        I.w = R[0] + R[1]
        I.r = R[0] + R[1]
    elif op.startswith("v_"):
        I.cls = "valu"
        I.w = R[0]
        I.r = flat(R[1:])
        if op.startswith(("v_fmac", "v_dot2c", "v_pk_fmac")):
            I.r = I.r + R[0]
        if op.startswith(("v_add_co", "v_addc_co", "v_sub_co", "v_subb_co")):
            I.w = R[0] + R[1]
            I.r = flat(R[2:])
        if op.startswith("v_cndmask") and len(ops) == 3:
            I.r = I.r + [("vcc", 0)]
    elif op.startswith("buffer_") or op.startswith("global_"):
        I.cls = "vmem"
        if op in ("buffer_wbl2", "buffer_inv"):
            pass
        elif " lds" in (" " + rest) and op.startswith("buffer_load"):
            I.lds_dma = True
            I.r = flat(R) + [("m0", 0)]
        elif op.startswith("global_load_lds"):
            I.lds_dma = True
            I.r = flat(R) + [("m0", 0)]
        elif "store" in op or "atomic" in op:
            I.r = flat(R)
            if op.startswith("buffer"):
                I.store_data = R[0]
                if "atomic" in op and "sc0" in rest:
                    I.w = R[0]
            else:
                I.store_data = R[1]
            if not ("x3" in op or "x4" in op):
                I.store_data = []
        else:
            I.w = R[0]
            I.r = flat(R[1:])
            if "d16" in op:
                I.r = I.r + R[0]
    elif op.startswith("ds_"):
        I.cls = "ds"
        if op.startswith(("ds_read", "ds_bpermute", "ds_permute", "ds_swizzle")):
            I.w = R[0]
            I.r = flat(R[1:])
        else:
            I.r = flat(R)
    elif op.startswith("s_"):
        I.cls = "salu"
        if op.startswith(("s_cmp", "s_cbranch", "s_branch", "s_waitcnt", "s_barrier", "s_endpgm", "s_sleep",
                          "s_setprio")):
            I.r = flat(R)
        elif op.startswith("s_and_saveexec") or op.startswith("s_or_saveexec"):
            I.w = R[0] + [("exec", 0)]
            I.r = flat(R[1:])
        else:
            I.w = R[0]
            I.r = flat(R[1:])
    else:
        raise ValueError("unknown op " + t)
    return I


class Tok:
    def __init__(self, kind, seq):
        self.kind, self.seq = kind, seq


class Asm:
    def __init__(self):
        self.lines = []
        self.hist = []
        self.pos = 0
        self.vm_issued = 0
        self.vm_done = 0
        self.lg_issued = 0
        self.lg_done = 0
        self.nops_inserted = 0

    def raw(self, s):
        self.lines.append(s)

    def comment(self, s):
        self.lines.append("    ; " + s)

    def label(self, name):
        self.lines.append(name + ":")

    def _need(self, I):
        need = 0
        rs, ws = set(I.r), set(I.w)
        vrs = {x for x in rs if x[0] in "va"}
        vws = {x for x in ws if x[0] in "va"}
        for (P, ppos) in reversed(self.hist):
            dist = self.pos - ppos - P.states
            if dist > 24:
                break
            pw = set(P.w)
            req = 0
            if P.cls == "valu":
                pvw = {x for x in pw if x[0] in "va"}
                psw = {x for x in pw if x[0] in ("s", "vcc")}
                isdot = P.op.startswith("v_dot")
                if I.cls == "mfma" and pvw & vrs:
                    req = max(req, 3 if isdot else 2)
                if I.cls == "valu":
                    if P.op.startswith(TRANS) and not I.op.startswith(TRANS) and (pvw & (vrs | vws)):
                        req = max(req, 1)
                    if I.op.startswith("v_permlane") and pvw & vrs:
                        req = max(req, 2)
                    if "dpp" in I.text and pvw & vrs:
                        req = max(req, 2)
                    if I.op.startswith(("v_readlane", "v_readfirstlane")) and pvw & vrs:
                        req = max(req, 1)
                    if psw & rs:
                        req = max(req, 4 if I.op.startswith(("v_readlane", "v_writelane")) else 2)
                    if isdot and (pvw & (vrs | vws)):
                        same_acc = False
                        if I.op == P.op:
                            ops = split_ops(I.text.split(None, 1)[1])
                            ab = set(regs_of(ops[1]) + regs_of(ops[2]))
                            if not (pvw & ab):
                                same_acc = True
                        if not same_acc:
                            req = max(req, 3)
                if isdot and I.cls in ("vmem", "ds") and pvw & vrs:
                    req = max(req, 3)
                if I.cls == "vmem" and psw & rs:
                    req = max(req, 5)
                if I.cls == "salu" and psw & rs:
                    req = max(req, 2)
                if ("exec", 0) in pw:
                    req = max(req, 5)
            elif P.cls == "mfma":
                big = {4: 8, 8: 12}[P.passes]
                ovl = {4: 6, 8: 10}[P.passes]
                war = {4: 3, 8: 7}[P.passes]
                if I.cls == "mfma":
                    if pw & set(I.srcAB):
                        req = max(req, big)
                    if pw & set(I.srcC):
                        if not (set(I.srcC) == pw and I.passes == P.passes):
                            req = max(req, ovl)
                    elif pw & ws:
                        req = max(req, big)
                elif I.cls in ("valu", "vmem", "ds"):
                    if pw & (vrs | vws):
                        req = max(req, big)
                    if I.cls == "valu" and set(P.srcC) & vws:
                        req = max(req, war)
                    if I.cls in ("vmem", "ds") and set(P.srcC) & vws:
                        req = max(req, war)
            elif P.cls == "salu":
                if ("m0", 0) in pw and I.lds_dma:
                    req = max(req, 1)
            elif P.cls == "vmem":
                if P.store_data and set(P.store_data) & ws:
                    req = max(req, 2)
            if req > dist:
                need = max(need, req - dist)
        return need

    def emit(self, text):
        I = classify(text)
        n = self._need(I)
        while n > 0:
            k = min(n, 16)
            N = classify("s_nop %d" % (k - 1))
            self.lines.append("    s_nop %d" % (k - 1))
            self.hist.append((N, self.pos))
            self.pos += k
            self.nops_inserted += 1
            n -= k
        self.lines.append("    " + I.text)
        self.hist.append((I, self.pos))
        self.pos += I.states
        if len(self.hist) > 64:
            self.hist = self.hist[-48:]
        if I.cls == "vmem":
            self.vm_issued += 1
            return Tok("vm", self.vm_issued)
        if I.cls == "ds":
            self.lg_issued += 1
            return Tok("lg", self.lg_issued)
        return None

    __call__ = emit

    def wait(self, *toks):
        vm = max([t.seq for t in toks if t is not None and t.kind == "vm"], default=0)
        lg = max([t.seq for t in toks if t is not None and t.kind == "lg"], default=0)
        parts = []
        if vm > self.vm_done:
            n = self.vm_issued - vm
            assert n <= 63, "vmcnt overflow %d" % n
            parts.append("vmcnt(%d)" % n)
            self.vm_done = vm
        if lg > self.lg_done:
            n = self.lg_issued - lg
            n = min(n, 15)
            parts.append("lgkmcnt(%d)" % n)
            self.lg_done = self.lg_issued - n
        if parts:
            self.emit("s_waitcnt " + " ".join(parts))

    def wait_all(self, vm=True, lg=True):
        parts = []
        if vm:
            parts.append("vmcnt(0)")
            self.vm_done = self.vm_issued
        if lg:
            parts.append("lgkmcnt(0)")
            self.lg_done = self.lg_issued
        self.emit("s_waitcnt " + " ".join(parts))

    def outstanding_vm(self):
        return self.vm_issued - self.vm_done

    def text(self):
        return "\n".join(self.lines) + "\n"


def vr(b, n=1):
    return "v%d" % b if n == 1 else "v[%d:%d]" % (b, b + n - 1)


def ar(b, n=1):
    return "a%d" % b if n == 1 else "a[%d:%d]" % (b, b + n - 1)


def sr(b, n=1):
    return "s%d" % b if n == 1 else "s[%d:%d]" % (b, b + n - 1)


class RegAlloc:
    def __init__(self, start, limit):
        self.next, self.limit = start, limit

    def __call__(self, n=1, align=None):
        if align is None:
            align = 4 if n >= 4 else (2 if n >= 2 else 1)
        b = (self.next + align - 1) // align * align
        self.next = b + n
        assert self.next <= self.limit, "out of regs"
        return b
```

```python
import sys, struct
from asmdsl import Asm, RegAlloc, vr, ar, sr

S, D, H, F = 2048, 512, 32, 1792
MB = 1 << 20
WS_PHIQ = 0
WS_X1 = 4 * MB
WS_X2 = 6 * MB
WS_X3 = 8 * MB
WS_H = 10 * MB
WS_KV = 18 * MB
KV_HEAD = 17 * 32 * 4
KV_LAYER = 32 * KV_HEAD

LOG2E = 1.4426950408889634


def f32bits(x):
    return "0x%08x" % struct.unpack("<I", struct.pack("<f", x))[0]


P_AX, P_WQKV, P_WPHI, P_WO, P_BX, P_W1, P_B1, P_W2, P_B2, P_OUT, P_DBG, P_WS = [16 + 2 * i for i in range(12)]

MFMA = "v_mfma_f32_16x16x32_bf16"


def prologue(a, name, nwg):
    a.raw(".p2align 8")
    a.raw(".globl %s" % name)
    a.raw(".type %s,@function" % name)
    a.raw("%s:" % name)
    a("s_cmp_ge_u32 s2, %d" % nwg)
    a("s_cbranch_scc1 %s_end" % name)
    a("s_load_dwordx16 s[16:31], s[0:1], 0")
    a("s_load_dwordx8 s[32:39], s[0:1], 64")


def srd(a, d, ptr, off, nbytes):
    if off:
        a("s_add_u32 s%d, s%d, 0x%x" % (d, ptr, off))
        a("s_addc_u32 s%d, s%d, 0" % (d + 1, ptr + 1))
    else:
        a("s_mov_b32 s%d, s%d" % (d, ptr))
        a("s_mov_b32 s%d, s%d" % (d + 1, ptr + 1))
    a("s_mov_b32 s%d, 0x%x" % (d + 2, nbytes))
    a("s_mov_b32 s%d, 0x00020000" % (d + 3))


def epilogue(a, name):
    a.raw("%s_end:" % name)
    a("s_endpgm")


def descriptor(name, nvgpr, nagpr, nsgpr=96):
    acc = (nvgpr + 3) // 4 * 4
    tot = acc + nagpr if nagpr else nvgpr
    return """.amdhsa_kernel %s
  .amdhsa_next_free_vgpr %d
  .amdhsa_next_free_sgpr %d
  .amdhsa_accum_offset %d
  .amdhsa_group_segment_fixed_size 0
  .amdhsa_kernarg_size 96
  .amdhsa_user_sgpr_count 2
  .amdhsa_user_sgpr_kernarg_segment_ptr 1
  .amdhsa_system_sgpr_workgroup_id_x 1
.end_amdhsa_kernel
""" % (name, tot, nsgpr, acc)


def allreduce_g(a, reg, tmp, op="v_add_f32"):
    a("v_mov_b32 v%d, v%d" % (tmp, reg))
    a("v_permlane16_swap_b32 v%d, v%d" % (reg, tmp))
    a("%s v%d, v%d, v%d" % (op, reg, reg, tmp))
    a("v_mov_b32 v%d, v%d" % (tmp, reg))
    a("v_permlane32_swap_b32 v%d, v%d" % (reg, tmp))
    a("%s v%d, v%d, v%d" % (op, reg, reg, tmp))


def pairreduce16(a, reg, tmp, op):
    a("v_mov_b32 v%d, v%d" % (tmp, reg))
    a("v_permlane16_swap_b32 v%d, v%d" % (reg, tmp))
    a("%s v%d, v%d, v%d" % (op, reg, reg, tmp))


def round_bf16(a, reg, tmp):
    a("v_cvt_pk_bf16_f32 v%d, v%d, v%d" % (tmp, reg, reg))
    a("v_lshlrev_b32 v%d, 16, v%d" % (reg, tmp))


MIMIC = True


def ln_stats(a, vsum, vsq, vt, vt2, double):
    allreduce_g(a, vsum, vt)
    allreduce_g(a, vsq, vt)
    a("v_mul_f32 v%d, %s, v%d" % (vsum, f32bits(1.0 / 512), vsum))
    a("v_mul_f32 v%d, %s, v%d" % (vsq, f32bits(1.0 / 512), vsq))
    a("v_fma_f32 v%d, -v%d, v%d, v%d" % (vsq, vsum, vsum, vsq))
    a("v_max_f32 v%d, 0, v%d" % (vsq, vsq))
    if not MIMIC:
        a("v_add_f32 v%d, %s, v%d" % (vt, f32bits(1e-5), vsq))
        a("v_rsq_f32 v%d, v%d" % (vt, vt))
        if double:
            a("v_mul_f32 v%d, v%d, v%d" % (vsq, vsq, vt))
            a("v_mul_f32 v%d, v%d, v%d" % (vsq, vsq, vt))
            a("v_add_f32 v%d, %s, v%d" % (vsq, f32bits(1e-5), vsq))
            a("v_rsq_f32 v%d, v%d" % (vsq, vsq))
            a("v_mul_f32 v%d, v%d, v%d" % (vsq, vsq, vt))
        else:
            a("v_mov_b32 v%d, v%d" % (vsq, vt))
        a("v_mul_f32 v%d, -v%d, v%d" % (vsum, vsum, vsq))
        return
    a("v_mov_b32 v%d, v%d" % (vt2, vsq))
    round_bf16(a, vt2, vt)
    a("v_add_f32 v%d, %s, v%d" % (vt2, f32bits(1e-5), vt2))
    round_bf16(a, vt2, vt)
    a("v_sqrt_f32 v%d, v%d" % (vt2, vt2))
    round_bf16(a, vt2, vt)
    a("v_cvt_pk_bf16_f32 v%d, v%d, v%d" % (vt, vsum, vsum))
    a("v_lshlrev_b32 v%d, 16, v%d" % (vt, vt))
    if not double:
        a("v_rcp_f32 v%d, v%d" % (vsq, vt2))
        a("v_mul_f32 v%d, -v%d, v%d" % (vsum, vt, vsq))
        return
    a("v_rcp_f32 v%d, v%d" % (vt2, vt2))
    a("v_sub_f32 v%d, v%d, v%d" % (vsum, vsum, vt))
    a("v_mul_f32 v%d, v%d, v%d" % (vsum, vsum, vt2))
    a("v_mul_f32 v%d, v%d, v%d" % (vsq, vsq, vt2))
    a("v_mul_f32 v%d, v%d, v%d" % (vsq, vsq, vt2))
    a("v_mul_f32 v%d, v%d, v%d" % (vt, vt, vt2))
    a("v_cvt_pk_bf16_f32 v%d, v%d, v%d" % (vsum, vsum, vsum))
    a("v_lshlrev_b32 v%d, 16, v%d" % (vsum, vsum))
    a("v_add_f32 v%d, v%d, v%d" % (vsum, vsum, vt))
    round_bf16(a, vsq, vt)
    a("v_add_f32 v%d, %s, v%d" % (vsq, f32bits(1e-5), vsq))
    round_bf16(a, vsq, vt)
    a("v_sqrt_f32 v%d, v%d" % (vsq, vsq))
    round_bf16(a, vsq, vt)
    a("v_rcp_f32 v%d, v%d" % (vsq, vsq))
    a("v_mul_f32 v%d, -v%d, v%d" % (vsum, vsum, vsq))
    a("v_mul_f32 v%d, v%d, v%d" % (vsq, vsq, vt2))


def kernel_Z(name):
    a = Asm()
    nbytes = 2 * KV_LAYER
    prologue(a, name, 34)
    a("v_lshlrev_b32 v1, 4, v0")
    a("s_lshl_b32 s3, s2, 12")
    a("v_mov_b32 v4, 0")
    a("v_mov_b32 v5, 0")
    a("v_mov_b32 v6, 0")
    a("v_mov_b32 v7, 0")
    a("s_waitcnt lgkmcnt(0)")
    srd(a, 40, P_WS, WS_KV, nbytes)
    a("buffer_store_dwordx4 v[4:7], v1, s[40:43], s3 offen")
    epilogue(a, name)
    return a.text(), descriptor(name, 8, 0, 48), (34, 256, 0)


class XLoader:
    def __init__(self, a, V, lane, layout, sTT, sSRD, sTmp):
        self.a, self.layout, self.sTT, self.sSRD, self.sTmp = a, layout, sTT, sSRD, sTmp
        if layout == "row":
            self.voff = V(1)
            t = V(1)
            a("v_and_b32 v%d, 15, v%d" % (self.voff, lane))
            a("v_lshlrev_b32 v%d, 10, v%d" % (self.voff, self.voff))
            a("v_lshrrev_b32 v%d, 4, v%d" % (t, lane))
            a("v_lshl_add_u32 v%d, v%d, 4, v%d" % (self.voff, t, self.voff))
        else:
            self.voff = V(4, 1)
            a("v_lshlrev_b32 v%d, 4, v%d" % (self.voff, lane))
            for q in range(1, 4):
                a("v_add_u32 v%d, %d, v%d" % (self.voff + q, q * 4096, self.voff))
        a("s_add_u32 s%d, s%d, 16384" % (sTmp, sTT))

    def load(self, dst, tt, s):
        so = self.sTT if tt == 0 else self.sTmp
        if self.layout == "row":
            return self.a("buffer_load_dwordx4 %s, v%d, s[%d:%d], s%d offen offset:%d" %
                          (vr(dst, 4), self.voff, self.sSRD, self.sSRD + 3, so, s * 64))
        return self.a("buffer_load_dwordx4 %s, v%d, s[%d:%d], s%d offen offset:%d" %
                      (vr(dst, 4), self.voff + (s >> 2), self.sSRD, self.sSRD + 3, so, (s & 3) * 1024))


def kernel_A(name, layer, xlayout):
    a = Asm()
    V = RegAlloc(1, 256)
    prologue(a, name, 256)
    sX, sW, sPW, sPQ, sKV = 40, 44, 48, 52, 56
    sR, sJ, sWv, sTT, sT0, sT1, sT2, sOnes, sWo = 60, 61, 62, 63, 64, 65, 66, 67, 68
    lane = V(1)
    a("v_and_b32 v%d, 63, v0" % lane)
    a("v_lshrrev_b32 v0, 6, v0")
    a("v_readfirstlane_b32 s%d, v0" % sWv)
    a("s_and_b32 s%d, s2, 3" % sT0)
    a("s_lshl_b32 s%d, s%d, 2" % (sT0, sT0))
    a("s_lshr_b32 s%d, s2, 3" % sT1)
    a("s_and_b32 s%d, s%d, 3" % (sT2, sT1))
    a("s_add_u32 s%d, s%d, s%d" % (sR, sT0, sT2))
    a("s_lshr_b32 s%d, s%d, 2" % (sT1, sT1))
    a("s_and_b32 s%d, s2, 4" % sT0)
    a("s_lshl_b32 s%d, s%d, 1" % (sT0, sT0))
    a("s_add_u32 s%d, s%d, s%d" % (sJ, sT0, sT1))
    a("s_mov_b32 s%d, 0x3f803f80" % sOnes)
    a("s_lshl_b32 s%d, s%d, 2" % (sTT, sR))
    a("s_add_u32 s%d, s%d, s%d" % (sTT, sTT, sWv))
    a("s_lshl_b32 s%d, s%d, 15" % (sTT, sTT))
    g = V(1)
    l15 = V(1)
    a("v_lshrrev_b32 v%d, 4, v%d" % (g, lane))
    a("v_and_b32 v%d, 15, v%d" % (l15, lane))
    XL = XLoader(a, V, lane, xlayout, sTT, sX, 69)
    vWd = V(1)
    t0, t1 = V(1), V(1)
    a("v_lshrrev_b32 v%d, 2, v%d" % (t0, lane))
    a("v_mul_u32_u24 v%d, 3072, v%d" % (vWd, t0))
    a("v_lshrrev_b32 v%d, 5, v%d" % (t0, lane))
    a("v_lshrrev_b32 v%d, 1, v%d" % (t1, lane))
    a("v_xor_b32 v%d, v%d, v%d" % (t0, t0, t1))
    a("v_and_b32 v%d, 1, v%d" % (t0, t0))
    a("v_lshl_add_u32 v%d, v%d, 5, v%d" % (vWd, t0, vWd))
    a("v_and_b32 v%d, 1, v%d" % (t0, lane))
    a("v_lshl_add_u32 v%d, v%d, 4, v%d" % (vWd, t0, vWd))
    vTA = V(4, 1)
    a("v_lshrrev_b32 v%d, 2, v%d" % (t0, lane))
    a("v_and_b32 v%d, 3, v%d" % (t0, t0))
    a("v_lshl_add_u32 v%d, v%d, 3, v%d" % (t0, g, t0))
    a("v_lshlrev_b32 v%d, 6, v%d" % (t0, t0))
    a("v_and_b32 v%d, 3, v%d" % (t1, lane))
    a("v_lshl_add_u32 v%d, v%d, 3, v%d" % (t0, t1, t0))
    a("v_and_b32 v%d, 1, v%d" % (t1, g))
    a("v_lshl_add_u32 v%d, v%d, 5, v%d" % (vTA, t1, t0))
    a("v_xor_b32 v%d, 32, v%d" % (vTA + 1, vTA))
    a("v_add_u32 v%d, 0x10000, v%d" % (vTA + 2, vTA))
    a("v_add_u32 v%d, 0x10000, v%d" % (vTA + 3, vTA + 1))
    CS_OFF = 98304
    a("v_mov_b32 v%d, 0" % t0)
    a("v_lshlrev_b32 v%d, 2, v%d" % (t1, lane))
    a("s_lshl_b32 s%d, s%d, 8" % (sT0, sWv))
    a("s_add_u32 s%d, s%d, %d" % (sT0, sT0, CS_OFF))
    a("v_add_u32 v%d, s%d, v%d" % (t1, sT0, t1))
    a("ds_write_b32 v%d, v%d" % (t1, t0))

    a("s_waitcnt lgkmcnt(0)")
    a.lg_done = a.lg_issued
    if layer == 0:
        srd(a, sX, P_AX, 0, 2 * MB)
    else:
        srd(a, sX, P_WS, WS_X2, 2 * MB)
    srd(a, sW, P_WQKV, 0, 512 * 1536 * 2)
    srd(a, sPW, P_WPHI, 0, 32 * 512)
    srd(a, sPQ, P_WS, WS_PHIQ, 4 * MB)
    srd(a, sKV, P_WS, WS_KV + layer * KV_LAYER, KV_LAYER)

    X = V(128)
    ACC = V(48)
    WF = V(48)
    vSum = V(2, 1)
    vSq = V(2, 1)
    vCs = V(6, 1)
    for i in range(2):
        a("v_mov_b32 v%d, 0" % (vSum + i))
        a("v_mov_b32 v%d, 0" % (vSq + i))
    for i in range(6):
        a("v_mov_b32 v%d, 0" % (vCs + i))

    a("s_mul_i32 s%d, s%d, 49152" % (sWo, sWv))
    a("s_lshl_b32 s%d, s%d, 6" % (sT0, sJ))
    a("s_add_u32 s%d, s%d, s%d" % (sWo, sWo, sT0))
    a("s_lshl_b32 s%d, s%d, 10" % (sT2, sWv))
    ctok = []
    for c8 in range(8):
        for kind in range(3):
            a("s_add_u32 s%d, s%d, %d" % (sT0, sWo, c8 * 196608 + kind * 1024))
            a("s_add_u32 m0, s%d, %d" % (sT2, kind * 32768 + c8 * 4096))
            a("buffer_load_dwordx4 v%d, s[%d:%d], s%d offen lds" % (vWd, sW, sW + 3, sT0))
        tk = None
        for s in (2 * c8, 2 * c8 + 1):
            for tt in range(2):
                tk = XL.load(X + (tt * 16 + s) * 4, tt, s)
        ctok.append(tk)

    vPWa = V(1)
    PW = X + 64
    VE = RegAlloc(X + 96, X + 128)
    a("v_lshrrev_b32 v%d, 3, v%d" % (t0, l15))
    a("v_lshlrev_b32 v%d, 9, v%d" % (vPWa, t0))
    a("v_lshl_add_u32 v%d, v%d, 7, v%d" % (vPWa, g, vPWa))
    a("v_and_b32 v%d, 4, v%d" % (t0, l15))
    a("v_lshl_add_u32 v%d, v%d, 2, v%d" % (vPWa, t0, vPWa))
    a("v_and_b32 v%d, 3, v%d" % (t0, l15))
    a("v_lshl_add_u32 v%d, v%d, 1, v%d" % (vPWa, t0, vPWa))
    a("s_lshl_b32 s%d, s%d, 10" % (sT1, sJ))

    def tr_reads(s, buf):
        tk = None
        for nt in range(6):
            kind, c = nt >> 1, nt & 1
            base = vTA + c + (2 if kind == 2 else 0)
            off = (kind & 1) * 32768 + s * 2048
            for p in range(2):
                tk = a("ds_read_b64_tr_b16 %s, v%d offset:%d" % (vr(WF + buf * 24 + nt * 4 + 2 * p, 2), base, off + p * 256))
        return tk

    def sync(c8):
        a.wait(ctok[c8])
        a("s_barrier")

    rtok = {}
    sync(0)
    rtok[0] = tr_reads(0, 0)
    for s in range(16):
        buf = s & 1
        if s + 1 < 16:
            if (s + 1) % 2 == 0:
                sync((s + 1) // 2)
            rtok[s + 1] = tr_reads(s + 1, buf ^ 1)
        a.wait(rtok[s])
        fill = []
        for tt in range(2):
            for i in range(4):
                xr = X + (tt * 16 + s) * 4 + i
                fill.append("v_dot2c_f32_bf16 v%d, s%d, v%d" % (vSum + tt, sOnes, xr))
                fill.append("v_dot2c_f32_bf16 v%d, v%d, v%d" % (vSq + tt, xr, xr))
        csfill = []
        for nt in range(6):
            for i in range(4):
                csfill.append("v_dot2c_f32_bf16 v%d, s%d, v%d" % (vCs + nt, sOnes, WF + buf * 24 + nt * 4 + i))
        k = 0
        for nt in range(6):
            for tt in range(2):
                acc = ACC + (tt * 6 + nt) * 4
                src = "0" if s == 0 else vr(acc, 4)
                a("%s %s, %s, %s, %s" % (MFMA, vr(acc, 4), vr(WF + buf * 24 + nt * 4, 4), vr(X + (tt * 16 + s) * 4, 4), src))
                for _ in range(2):
                    if k < len(fill):
                        a(fill[k])
                        k += 1
        while k < len(fill):
            a(fill[k])
            k += 1
        lab = "%s_cs%d" % (name, s)
        a("s_cmp_lg_u32 s%d, %d" % (sWv, s & 3))
        a("s_cbranch_scc1 %s" % lab)
        for c in csfill:
            a(c)
        a("s_nop 3")
        a.label(lab)
        if s == 2:
            pwtok = None
            for ot in range(2):
                for i in range(4):
                    pwtok = a("buffer_load_ushort v%d, v%d, s[%d:%d], s%d offen offset:%d" %
                              (PW + ot * 4 + i, vPWa, sPW, sPW + 3, sT1, i * 32 + ot * 8))

    T = X
    a("s_nop 7")
    a("v_lshlrev_b32 v%d, 2, v%d" % (t0, l15))
    a("v_add_u32 v%d, %d, v%d" % (t0, CS_OFF, t0))
    for nt in range(6):
        a("ds_add_f32 v%d, v%d offset:%d" % (t0, vCs + nt, nt * 64))
    for tt in range(2):
        ln_stats(a, vSum + tt, vSq + tt, T + 0, T + 1, False)
    a.wait(pwtok)
    a("v_cmp_gt_u32 vcc, 8, v%d" % l15)
    PWF = VE(8)
    for ot in range(2):
        a("v_lshl_or_b32 v%d, v%d, 16, v%d" % (T + 2, PW + ot * 4 + 1, PW + ot * 4 + 0))
        a("v_lshl_or_b32 v%d, v%d, 16, v%d" % (T + 3, PW + ot * 4 + 3, PW + ot * 4 + 2))
        a("v_cndmask_b32 v%d, 0, v%d, vcc" % (PWF + ot * 4 + 0, T + 2))
        a("v_cndmask_b32 v%d, 0, v%d, vcc" % (PWF + ot * 4 + 1, T + 3))
        a("v_cndmask_b32 v%d, v%d, 0, vcc" % (PWF + ot * 4 + 2, T + 2))
        a("v_cndmask_b32 v%d, v%d, 0, vcc" % (PWF + ot * 4 + 3, T + 3))
    a.wait_all(vm=False, lg=True)
    a("s_barrier")
    CS = T + 8
    a("v_lshlrev_b32 v%d, 4, v%d" % (t0, g))
    a("v_add_u32 v%d, %d, v%d" % (t0, CS_OFF, t0))
    tk = None
    for nt in range(6):
        tk = a("ds_read_b128 %s, v%d offset:%d" % (vr(CS + nt * 4, 4), t0, nt * 64))
    a.wait(tk)
    PK = T + 32
    for tt in range(2):
        for nt in range(6):
            acc = ACC + (tt * 6 + nt) * 4
            for r in range(4):
                a("v_mul_f32 v%d, v%d, v%d" % (acc + r, acc + r, vSq + tt))
                a("v_fmac_f32 v%d, v%d, v%d" % (acc + r, vSum + tt, CS + nt * 4 + r))
            dst = PK + (tt * 3 + (nt >> 1)) * 4 + (nt & 1) * 2
            a("v_cvt_pk_bf16_f32 v%d, v%d, v%d" % (dst, acc, acc + 1))
            a("v_cvt_pk_bf16_f32 v%d, v%d, v%d" % (dst + 1, acc + 2, acc + 3))
    PKI_OFF, VI_OFF = 0, 16384
    vtok = VE(1)
    a("s_lshl_b32 s%d, s%d, 5" % (sT0, sWv))
    a("v_add_u32 v%d, s%d, v%d" % (vtok, sT0, l15))
    vVa = VE(1)
    a("v_lshlrev_b32 v%d, 5, v%d" % (vVa, vtok))
    a("v_lshl_add_u32 v%d, v%d, 3, v%d" % (vVa, g, vVa))
    for tt in range(2):
        for hh in range(2):
            a("ds_write_b64 v%d, %s offset:%d" % (vVa, vr(PK + (tt * 3 + 2) * 4 + hh * 2, 2), VI_OFF + hh * 4096 + tt * 512))
    P = T + 56
    E = T + 64
    OUT = T + 80
    mx, mn, sp, sm, tq = T + 88, T + 89, T + 90, T + 91, T + 92
    sL2E = sT2
    a("s_mov_b32 s%d, %s" % (sL2E, f32bits(LOG2E)))
    vPKa = VE(1)
    a("v_lshrrev_b32 v%d, 1, v%d" % (t0, g))
    a("v_lshlrev_b32 v%d, 13, v%d" % (vPKa, t0))
    a("v_lshl_add_u32 v%d, v%d, 6, v%d" % (vPKa, vtok, vPKa))
    a("v_and_b32 v%d, 1, v%d" % (t1, g))
    a("v_lshl_add_u32 v%d, v%d, 4, v%d" % (vPKa, t1, vPKa))
    vPQa = VE(1)
    a("v_lshlrev_b32 v%d, 10, v%d" % (vPQa, t0))
    a("v_lshl_add_u32 v%d, v%d, 8, v%d" % (vPQa, t1, vPQa))
    a("v_lshl_add_u32 v%d, v%d, 4, v%d" % (vPQa, l15, vPQa))
    sPQo = sT0
    a("s_lshl_b32 s%d, s%d, 1" % (sPQo, sTT))
    a("s_lshl_b32 s%d, s%d, 11" % (sT1, sJ))
    a("s_add_u32 s%d, s%d, s%d" % (sPQo, sPQo, sT1))
    a("s_add_u32 s%d, s%d, 32768" % (sT1, sPQo))
    for tt in range(2):
        for kind in range(2):
            for ot in range(2):
                a("%s %s, %s, %s, 0" % (MFMA, vr(P + ot * 4, 4), vr(PWF + ot * 4, 4), vr(PK + (tt * 3 + kind) * 4, 4)))
            a("v_max3_f32 v%d, v%d, v%d, v%d" % (mx, P, P + 1, P + 2))
            a("v_min3_f32 v%d, v%d, v%d, v%d" % (mn, P, P + 1, P + 2))
            a("v_max3_f32 v%d, v%d, v%d, v%d" % (mx, mx, P + 3, P + 4))
            a("v_min3_f32 v%d, v%d, v%d, v%d" % (mn, mn, P + 3, P + 4))
            a("v_max3_f32 v%d, v%d, v%d, v%d" % (mx, mx, P + 5, P + 6))
            a("v_min3_f32 v%d, v%d, v%d, v%d" % (mn, mn, P + 5, P + 6))
            a("v_max_f32 v%d, v%d, v%d" % (mx, mx, P + 7))
            a("v_min_f32 v%d, v%d, v%d" % (mn, mn, P + 7))
            pairreduce16(a, mx, tq, "v_max_f32")
            pairreduce16(a, mn, tq, "v_min_f32")
            a("v_mul_f32 v%d, s%d, v%d" % (mx, sL2E, mx))
            a("v_mul_f32 v%d, s%d, v%d" % (mn, sL2E, mn))
            for i in range(8):
                a("v_fma_f32 v%d, v%d, s%d, -v%d" % (E + i, P + i, sL2E, mx))
                a("v_fma_f32 v%d, -v%d, s%d, v%d" % (E + 8 + i, P + i, sL2E, mn))
            for i in range(16):
                a("v_exp_f32 v%d, v%d" % (E + i, E + i))
            for (acc, b) in ((sp, E), (sm, E + 8)):
                a("v_add_f32 v%d, v%d, v%d" % (acc, b, b + 1))
                for i in range(2, 8):
                    a("v_add_f32 v%d, v%d, v%d" % (acc, acc, b + i))
                pairreduce16(a, acc, tq, "v_add_f32")
                a("v_rcp_f32 v%d, v%d" % (acc, acc))
            for i in range(8):
                a("v_mul_f32 v%d, v%d, v%d" % (E + i, E + i, sp))
                a("v_mul_f32 v%d, v%d, v%d" % (E + 8 + i, E + 8 + i, sm))
            for i in range(8):
                a("v_cvt_pk_bf16_f32 v%d, v%d, v%d" % (OUT + i, E + 2 * i, E + 2 * i + 1))
            if kind == 0:
                so = sPQo if tt == 0 else sT1
                a("buffer_store_dwordx4 %s, v%d, s[%d:%d], s%d offen" % (vr(OUT, 4), vPQa, sPQ, sPQ + 3, so))
                a("buffer_store_dwordx4 %s, v%d, s[%d:%d], s%d offen offset:512" % (vr(OUT + 4, 4), vPQa, sPQ, sPQ + 3, so))
            else:
                a("ds_write_b128 v%d, %s offset:%d" % (vPKa, vr(OUT, 4), PKI_OFF + tt * 1024))
                a("ds_write_b128 v%d, %s offset:%d" % (vPKa, vr(OUT + 4, 4), PKI_OFF + tt * 1024 + 32))
            a("s_nop 1")
    a.wait_all(vm=False, lg=True)
    a("s_barrier")
    vA, vB = VE(1), VE(1)
    a("v_lshrrev_b32 v%d, 2, v%d" % (t0, lane))
    a("v_and_b32 v%d, 3, v%d" % (t1, lane))
    a("s_lshr_b32 s%d, s%d, 1" % (sT0, sWv))
    a("s_and_b32 s%d, s%d, 1" % (sT1, sWv))
    a("s_lshl_b32 s%d, s%d, 12" % (sT2, sT0))
    a("v_lshlrev_b32 v%d, 5, v%d" % (vA, t0))
    a("v_lshl_add_u32 v%d, v%d, 3, v%d" % (vA, t1, vA))
    a("v_add_u32 v%d, s%d, v%d" % (vA, sT2, vA))
    a("s_lshl_b32 s%d, s%d, 13" % (sT2, sT0))
    a("s_lshl_b32 s%d, s%d, 5" % (sWo, sT1))
    a("s_add_u32 s%d, s%d, s%d" % (sT2, sT2, sWo))
    a("v_lshlrev_b32 v%d, 6, v%d" % (vB, t0))
    a("v_lshl_add_u32 v%d, v%d, 3, v%d" % (vB, t1, vB))
    a("v_add_u32 v%d, s%d, v%d" % (vB, sT2, vB))
    AF, BF, ONE, KV, Z = T + 0, T + 16, T + 32, T + 36, T + 40
    for i in range(4):
        a("v_mov_b32 v%d, 0x3f803f80" % (ONE + i))
    tks = []
    for s in range(4):
        for p in range(2):
            a("ds_read_b64_tr_b16 %s, v%d offset:%d" % (vr(AF + s * 4 + 2 * p, 2), vA, VI_OFF + (32 * s + 16 * p) * 32))
            tk = a("ds_read_b64_tr_b16 %s, v%d offset:%d" % (vr(BF + s * 4 + 2 * p, 2), vB, PKI_OFF + (32 * s + 16 * p) * 64))
        tks.append(tk)
    for s in range(4):
        a.wait(tks[s])
        a("%s %s, %s, %s, %s" % (MFMA, vr(KV, 4), vr(AF + s * 4, 4), vr(BF + s * 4, 4), "0" if s == 0 else vr(KV, 4)))
        a("%s %s, %s, %s, %s" % (MFMA, vr(Z, 4), vr(ONE, 4), vr(BF + s * 4, 4), "0" if s == 0 else vr(Z, 4)))
    a("s_lshl_b32 s%d, s%d, 1" % (sT2, sJ))
    a("s_add_u32 s%d, s%d, s%d" % (sT2, sT2, sT0))
    a("s_mul_i32 s%d, s%d, %d" % (sT2, sT2, KV_HEAD))
    a("s_lshl_b32 s%d, s%d, 6" % (sT1, sT1))
    a("s_add_u32 s%d, s%d, s%d" % (sT2, sT2, sT1))
    a("v_lshlrev_b32 v%d, 9, v%d" % (vA, g))
    a("v_lshl_add_u32 v%d, v%d, 2, v%d" % (vA, l15, vA))
    for r in range(4):
        a("buffer_atomic_add_f32 v%d, v%d, s[%d:%d], s%d offen offset:%d" % (KV + r, vA, sKV, sKV + 3, sT2, r * 128))
    a("s_mov_b64 exec, 0xffff")
    a("buffer_atomic_add_f32 v%d, v%d, s[%d:%d], s%d offen offset:%d" % (Z, vA, sKV, sKV + 3, sT2, 16 * 128))
    epilogue(a, name)
    return a.text(), descriptor(name, V.next, 0), (256, 256, 98304 + 1024)


RED_STRIDE = 272
WAVE_LDS = 40960


def xaddr_epilogue(a, V, tid_lane, sWv, sRB, sCB, layout, sOut, sTmp):
    v = V(1)
    t = V(1)
    if layout == "row":
        a("v_lshrrev_b32 v%d, 2, v%d" % (v, tid_lane))
        a("v_lshlrev_b32 v%d, 10, v%d" % (v, v))
        a("v_and_b32 v%d, 3, v%d" % (t, tid_lane))
        a("v_lshl_add_u32 v%d, v%d, 5, v%d" % (v, t, v))
        a("s_lshl_b32 s%d, s%d, 2" % (sOut, sRB))
        a("s_add_u32 s%d, s%d, s%d" % (sOut, sOut, sWv))
        a("s_lshl_b32 s%d, s%d, 14" % (sOut, sOut))
        a("s_lshl_b32 s%d, s%d, 7" % (sTmp, sCB))
        a("s_add_u32 s%d, s%d, s%d" % (sOut, sOut, sTmp))
        return v, (0, 16)
    else:
        a("v_lshrrev_b32 v%d, 2, v%d" % (v, tid_lane))
        a("v_lshlrev_b32 v%d, 4, v%d" % (v, v))
        a("v_and_b32 v%d, 3, v%d" % (t, tid_lane))
        a("v_lshl_add_u32 v%d, v%d, 9, v%d" % (v, t, v))
        a("s_lshl_b32 s%d, s%d, 2" % (sOut, sRB))
        a("s_add_u32 s%d, s%d, s%d" % (sOut, sOut, sWv))
        a("s_lshl_b32 s%d, s%d, 14" % (sOut, sOut))
        a("s_lshl_b32 s%d, s%d, 11" % (sTmp, sCB))
        a("s_add_u32 s%d, s%d, s%d" % (sOut, sOut, sTmp))
        return v, (0, 256)


def w64_setup(a, V, lane, g, sWv):
    vWd = V(1)
    t0, t1 = V(1), V(1)
    a("v_lshrrev_b32 v%d, 3, v%d" % (t0, lane))
    a("v_lshlrev_b32 v%d, 10, v%d" % (vWd, t0))
    a("v_lshrrev_b32 v%d, 4, v%d" % (t0, lane))
    a("v_lshrrev_b32 v%d, 1, v%d" % (t1, lane))
    a("v_xor_b32 v%d, v%d, v%d" % (t0, t0, t1))
    a("v_and_b32 v%d, 3, v%d" % (t0, t0))
    a("v_lshl_add_u32 v%d, v%d, 5, v%d" % (vWd, t0, vWd))
    a("v_and_b32 v%d, 1, v%d" % (t0, lane))
    a("v_lshl_add_u32 v%d, v%d, 4, v%d" % (vWd, t0, vWd))
    vT = V(4, 1)
    sT = 70
    a("s_mul_i32 s%d, s%d, %d" % (sT, sWv, WAVE_LDS))
    a("v_lshrrev_b32 v%d, 2, v%d" % (t0, lane))
    a("v_lshlrev_b32 v%d, 7, v%d" % (vT, t0))
    a("v_and_b32 v%d, 3, v%d" % (t1, lane))
    a("v_lshl_add_u32 v%d, v%d, 3, v%d" % (vT, t1, vT))
    a("v_add_u32 v%d, s%d, v%d" % (vT, sT, vT))
    a("v_lshrrev_b32 v%d, 3, v%d" % (t0, lane))
    a("v_and_b32 v%d, 3, v%d" % (t0, t0))
    a("v_lshl_add_u32 v%d, v%d, 5, v%d" % (vT, t0, vT))
    for nt in range(1, 4):
        a("v_xor_b32 v%d, %d, v%d" % (vT + nt, nt * 32, vT))
    return vWd, vT, sT


def reduce_epilogue(a, V, lane, g, l15, sWv, sLdsW, ACCa, XO, bias_regs, vXo, sXo, xo_offs, vXs, sXs, xs_offs, sSt, xtok, R=None):
    t0, t1 = V(1), V(1)
    a("v_mul_u32_u24 v%d, %d, v%d" % (t0, RED_STRIDE, l15))
    a("v_lshl_add_u32 v%d, v%d, 4, v%d" % (t0, g, t0))
    a("v_add_u32 v%d, s%d, v%d" % (t0, sLdsW, t0))
    a.wait_all(vm=False, lg=True)
    a("s_nop 7")
    for tt in range(4):
        for nt in range(4):
            a("ds_write_b128 v%d, %s offset:%d" % (t0, ar(ACCa + (tt * 4 + nt) * 4, 4), tt * 16 * RED_STRIDE + nt * 64))
    a("v_lshrrev_b32 v%d, 2, v%d" % (t1, lane))
    a("s_lshl_b32 s%d, s%d, 4" % (sSt, sWv))
    a("v_add_u32 v%d, s%d, v%d" % (t1, sSt, t1))
    a("v_mul_u32_u24 v%d, %d, v%d" % (t1, RED_STRIDE, t1))
    a("v_and_b32 v%d, 3, v%d" % (t0, lane))
    a("v_lshl_add_u32 v%d, v%d, 6, v%d" % (t1, t0, t1))
    a.wait_all(vm=False, lg=True)
    a("s_barrier")
    if R is None:
        R = V(64)
    tks = []
    for w in range(4):
        for i in range(4):
            tk = a("ds_read_b128 %s, v%d offset:%d" % (vr(R + w * 16 + i * 4, 4), t1, w * WAVE_LDS + i * 16)) \
                if w * WAVE_LDS + i * 16 < 65536 else None
            if tk is None:
                if w == 2 and i == 0:
                    a("v_add_u32 v%d, %d, v%d" % (t0, 2 * WAVE_LDS, t1))
                tk = a("ds_read_b128 %s, v%d offset:%d" % (vr(R + w * 16 + i * 4, 4), t0, (w - 2) * WAVE_LDS + i * 16))
        tks.append(tk)
    a.wait(tks[1])
    for i in range(16):
        a("v_add_f32 v%d, v%d, v%d" % (R + i, R + i, R + 16 + i))
    a.wait(tks[3])
    for i in range(16):
        a("v_add_f32 v%d, v%d, v%d" % (R + 32 + i, R + 32 + i, R + 48 + i))
    for i in range(16):
        a("v_add_f32 v%d, v%d, v%d" % (R + i, R + i, R + 32 + i))
    a.wait(xtok)
    if bias_regs is not None:
        for i in range(8):
            a("v_lshlrev_b32 v%d, 16, v%d" % (R + 16, bias_regs + i))
            a("v_and_b32 v%d, 0xffff0000, v%d" % (R + 17, bias_regs + i))
            a("v_add_f32 v%d, v%d, v%d" % (R + 2 * i, R + 2 * i, R + 16))
            a("v_add_f32 v%d, v%d, v%d" % (R + 2 * i + 1, R + 2 * i + 1, R + 17))
    for i in range(8):
        a("v_cvt_pk_bf16_f32 v%d, v%d, v%d" % (R + 32 + i, R + 2 * i, R + 2 * i + 1))
    for i in range(8):
        a("v_lshlrev_b32 v%d, 16, v%d" % (R + 2 * i, R + 32 + i))
        a("v_and_b32 v%d, 0xffff0000, v%d" % (R + 2 * i + 1, R + 32 + i))
        a("v_lshlrev_b32 v%d, 16, v%d" % (R + 16, XO + i))
        a("v_and_b32 v%d, 0xffff0000, v%d" % (R + 17, XO + i))
        a("v_add_f32 v%d, v%d, v%d" % (R + 2 * i, R + 2 * i, R + 16))
        a("v_add_f32 v%d, v%d, v%d" % (R + 2 * i + 1, R + 2 * i + 1, R + 17))
    for i in range(8):
        a("v_cvt_pk_bf16_f32 v%d, v%d, v%d" % (R + 32 + i, R + 2 * i, R + 2 * i + 1))
    a("buffer_store_dwordx4 %s, v%d, s[%d:%d], s%d offen offset:%d" % (vr(R + 32, 4), vXs, sXs[0], sXs[0] + 3, sXs[1], xs_offs[0]))
    a("buffer_store_dwordx4 %s, v%d, s[%d:%d], s%d offen offset:%d" % (vr(R + 36, 4), vXs, sXs[0], sXs[0] + 3, sXs[1], xs_offs[1]))


def ids_64(a, sRB, sCB, sT0):
    a("s_and_b32 s%d, s2, 7" % sRB)
    a("s_lshl_b32 s%d, s%d, 2" % (sRB, sRB))
    a("s_lshr_b32 s%d, s2, 3" % sT0)
    a("s_and_b32 s%d, s%d, 3" % (sT0, sT0))
    a("s_add_u32 s%d, s%d, s%d" % (sRB, sRB, sT0))
    a("s_lshr_b32 s%d, s2, 5" % sCB)


def xbuf(which):
    return {"ax": (P_AX, 0, "row"), "x1": (P_WS, WS_X1, XLAY), "x2": (P_WS, WS_X2, XLAY), "x3": (P_WS, WS_X3, XLAY),
            "out": (P_OUT, 0, "row")}[which]


def kernel_B(name, layer, xin, xout):
    a = Asm()
    V = RegAlloc(1, 256)
    prologue(a, name, 256)
    sW, sPQ, sKV, sXi, sXo = 40, 44, 48, 52, 56
    sRB, sCB, sWv, sT0, sT1, sT2, sXiO, sXoO, sPQo = 60, 61, 62, 63, 64, 65, 66, 67, 68
    lane = V(1)
    a("v_and_b32 v%d, 63, v0" % lane)
    a("v_lshrrev_b32 v0, 6, v0")
    a("v_readfirstlane_b32 s%d, v0" % sWv)
    ids_64(a, sRB, sCB, sT0)
    g, l15 = V(1), V(1)
    a("v_lshrrev_b32 v%d, 4, v%d" % (g, lane))
    a("v_and_b32 v%d, 15, v%d" % (l15, lane))
    vWd, vT, sLdsW = w64_setup(a, V, lane, g, sWv)
    pi, oi, li = xbuf(xin)
    po, oo, lo = xbuf(xout)
    vXi, xi_offs = xaddr_epilogue(a, V, lane, sWv, sRB, sCB, li, sXiO, sT0)
    vXs, xs_offs = xaddr_epilogue(a, V, lane, sWv, sRB, sCB, lo, sXoO, sT0)
    vPQ = V(1)
    a("v_lshlrev_b32 v%d, 4, v%d" % (vPQ, lane))
    vKV, vZ = V(1), V(1)
    a("v_lshlrev_b32 v%d, 5, v%d" % (vZ, g))
    a("v_lshl_add_u32 v%d, v%d, 7, v%d" % (vKV, l15, vZ))
    a("s_waitcnt lgkmcnt(0)")
    srd(a, sW, P_WO, 0, 512 * 512 * 2)
    srd(a, sPQ, P_WS, WS_PHIQ, 4 * MB)
    srd(a, sKV, P_WS, WS_KV + layer * KV_LAYER, KV_LAYER)
    srd(a, sXi, pi, oi, 2 * MB)
    srd(a, sXo, po, oo, 2 * MB)
    PHI, ACC = 0, 128
    KVT = V(64)
    KF = V(16)
    WF = V(16)
    O = V(64)
    BF = V(16)
    XO = V(8)
    a("s_lshl_b32 s%d, s%d, 7" % (sPQo, sRB))
    a("s_lshl_b32 s%d, s%d, 3" % (sT0, sWv))
    a("s_add_u32 s%d, s%d, s%d" % (sPQo, sPQo, sT0))
    a("s_lshl_b32 s%d, s%d, 10" % (sPQo, sPQo))
    sKVo, sWo = 71, 72
    a("s_mul_i32 s%d, s%d, %d" % (sKVo, sWv, 8 * KV_HEAD))
    a("s_lshl_b32 s%d, s%d, 17" % (sWo, sWv))
    a("s_lshl_b32 s%d, s%d, 7" % (sT0, sCB))
    a("s_add_u32 s%d, s%d, s%d" % (sWo, sWo, sT0))
    toks = {}

    def issue(hp):
        tb = KVT + (hp & 1) * 32
        for hh in range(2):
            a("s_add_u32 s%d, s%d, %d" % (sT0, sKVo, (hp * 2 + hh) * KV_HEAD))
            a("buffer_load_dwordx4 %s, v%d, s[%d:%d], s%d offen" % (vr(tb + hh * 16, 4), vKV, sKV, sKV + 3, sT0))
            a("buffer_load_dwordx4 %s, v%d, s[%d:%d], s%d offen offset:16" % (vr(tb + hh * 16 + 4, 4), vKV, sKV, sKV + 3, sT0))
            a("buffer_load_dwordx4 %s, v%d, s[%d:%d], s%d offen offset:2048" % (vr(tb + hh * 16 + 8, 4), vZ, sKV, sKV + 3, sT0))
            k = a("buffer_load_dwordx4 %s, v%d, s[%d:%d], s%d offen offset:2064" % (vr(tb + hh * 16 + 12, 4), vZ, sKV, sKV + 3, sT0))
        toks[("kv", hp)] = k
        for tt in range(4):
            a("s_add_u32 s%d, s%d, %d" % (sT0, sPQo, tt * 32768 + hp * 2048))
            for hh in range(2):
                k = a("buffer_load_dwordx4 %s, v%d, s[%d:%d], s%d offen offset:%d" %
                      (ar(PHI + (tt * 8 + hp * 2 + hh) * 4, 4), vPQ, sPQ, sPQ + 3, sT0, hh * 1024))
        toks[("phi", hp)] = k
        for i in range(4):
            a("s_add_u32 s%d, s%d, %d" % (sT0, sWo, (hp * 32 + i * 8) * 1024))
            a("s_add_u32 m0, s%d, %d" % (sLdsW, hp * 4096 + i * 1024))
            k = a("buffer_load_dwordx4 v%d, s[%d:%d], s%d offen lds" % (vWd, sW, sW + 3, sT0))
        toks[("w", hp)] = k

    issue(0)
    issue(1)
    a("buffer_load_dwordx4 %s, v%d, s[%d:%d], s%d offen offset:%d" % (vr(XO, 4), vXi, sXi, sXi + 3, sXiO, xi_offs[0]))
    xtok = a("buffer_load_dwordx4 %s, v%d, s[%d:%d], s%d offen offset:%d" % (vr(XO + 4, 4), vXi, sXi, sXi + 3, sXiO, xi_offs[1]))
    sEps = 73
    a("s_mov_b32 s%d, %s" % (sEps, f32bits(1e-6)))
    for hp in range(4):
        tb = KVT + (hp & 1) * 32
        a.wait(toks[("kv", hp)])
        for i in range(16):
            a("v_cvt_pk_bf16_f32 v%d, v%d, v%d" % (KF + i, tb + 2 * i, tb + 2 * i + 1))
        if hp + 2 < 4:
            issue(hp + 2)
        a.wait(toks[("phi", hp)])
        for tt in range(4):
            for hh in range(2):
                ph = ar(PHI + (tt * 8 + hp * 2 + hh) * 4, 4)
                a("%s %s, %s, %s, 0" % (MFMA, vr(O + tt * 16 + hh * 8, 4), vr(KF + hh * 8, 4), ph))
                a("%s %s, %s, %s, 0" % (MFMA, vr(O + tt * 16 + hh * 8 + 4, 4), vr(KF + hh * 8 + 4, 4), ph))
        a.wait(toks[("w", hp)])
        tk = None
        for nt in range(4):
            for p in range(2):
                tk = a("ds_read_b64_tr_b16 %s, v%d offset:%d" % (vr(WF + nt * 4 + 2 * p, 2), vT + nt, hp * 4096 + p * 2048))
        for tt in range(4):
            for hh in range(2):
                o = O + tt * 16 + hh * 8
                a("v_add_f32 v%d, s%d, v%d" % (o + 4, sEps, o + 4))
                a("v_rcp_f32 v%d, v%d" % (o + 4, o + 4))
                for r in range(4):
                    a("v_mul_f32 v%d, v%d, v%d" % (o + r, o + r, o + 4))
                a("v_cvt_pk_bf16_f32 v%d, v%d, v%d" % (BF + tt * 4 + hh * 2, o, o + 1))
                a("v_cvt_pk_bf16_f32 v%d, v%d, v%d" % (BF + tt * 4 + hh * 2 + 1, o + 2, o + 3))
        a.wait(tk)
        for tt in range(4):
            for nt in range(4):
                acc = ar(ACC + (tt * 4 + nt) * 4, 4)
                a("%s %s, %s, %s, %s" % (MFMA, acc, vr(WF + nt * 4, 4), vr(BF + tt * 4, 4), "0" if hp == 0 else acc))
    reduce_epilogue(a, V, lane, g, l15, sWv, sLdsW, ACC, XO, None, vXi, None, None, vXs, (sXo, sXoO), xs_offs, sT0, xtok, R=O)
    epilogue(a, name)
    return a.text(), descriptor(name, V.next, 192), (256, 256, 4 * WAVE_LDS)


def kernel_C(name, xin):
    a = Asm()
    V = RegAlloc(1, 256)
    prologue(a, name, 256)
    sX, sW, sB, sH = 40, 44, 48, 52
    sR, sJ, sWv, sTT, sT0, sT1, sT2, sOnes, sWo, sWo2 = 60, 61, 62, 63, 64, 65, 66, 67, 68, 70
    lane = V(1)
    a("v_and_b32 v%d, 63, v0" % lane)
    a("v_lshrrev_b32 v0, 6, v0")
    a("v_readfirstlane_b32 s%d, v0" % sWv)
    a("s_and_b32 s%d, s2, 3" % sT0)
    a("s_lshl_b32 s%d, s%d, 2" % (sT0, sT0))
    a("s_lshr_b32 s%d, s2, 3" % sT1)
    a("s_and_b32 s%d, s%d, 3" % (sT2, sT1))
    a("s_add_u32 s%d, s%d, s%d" % (sR, sT0, sT2))
    a("s_lshr_b32 s%d, s%d, 2" % (sT1, sT1))
    a("s_and_b32 s%d, s2, 4" % sT0)
    a("s_lshl_b32 s%d, s%d, 1" % (sT0, sT0))
    a("s_add_u32 s%d, s%d, s%d" % (sJ, sT0, sT1))
    a("s_mov_b32 s%d, 0x3f803f80" % sOnes)
    a("s_lshl_b32 s%d, s%d, 2" % (sTT, sR))
    a("s_add_u32 s%d, s%d, s%d" % (sTT, sTT, sWv))
    a("s_lshl_b32 s%d, s%d, 15" % (sTT, sTT))
    g, l15 = V(1), V(1)
    a("v_lshrrev_b32 v%d, 4, v%d" % (g, lane))
    a("v_and_b32 v%d, 15, v%d" % (l15, lane))
    px, ox, lx = xbuf(xin)
    XL = XLoader(a, V, lane, lx, sTT, sX, 69)
    LDW = 3584
    vWd, vWs = V(1), V(1)
    t0, t1 = V(1), V(1)
    a("v_lshrrev_b32 v%d, 2, v%d" % (t0, lane))
    a("v_mul_u32_u24 v%d, %d, v%d" % (vWd, LDW, t0))
    a("v_lshrrev_b32 v%d, 5, v%d" % (t0, lane))
    a("v_lshrrev_b32 v%d, 1, v%d" % (t1, lane))
    a("v_xor_b32 v%d, v%d, v%d" % (t0, t0, t1))
    a("v_and_b32 v%d, 1, v%d" % (t0, t0))
    a("v_lshl_add_u32 v%d, v%d, 5, v%d" % (vWd, t0, vWd))
    a("v_and_b32 v%d, 1, v%d" % (t0, lane))
    a("v_lshl_add_u32 v%d, v%d, 4, v%d" % (vWd, t0, vWd))
    a("v_lshrrev_b32 v%d, 3, v%d" % (t0, lane))
    a("v_and_b32 v%d, 4, v%d" % (vWs, t0))
    a("v_and_b32 v%d, 1, v%d" % (t1, t0))
    a("v_lshl_add_u32 v%d, v%d, 1, v%d" % (vWs, t1, vWs))
    a("v_bfe_u32 v%d, v%d, 1, 1" % (t1, t0))
    a("v_add_u32 v%d, v%d, v%d" % (vWs, vWs, t1))
    a("v_bfe_u32 v%d, v%d, 1, 2" % (t1, lane))
    a("v_lshl_add_u32 v%d, v%d, 2, v%d" % (vWs, vWs, t1))
    a("v_mul_u32_u24 v%d, %d, v%d" % (vWs, LDW, vWs))
    a("v_and_b32 v%d, 1, v%d" % (t0, lane))
    a("v_lshl_add_u32 v%d, v%d, 4, v%d" % (vWs, t0, vWs))
    vTA = V(5, 1)
    a("v_lshrrev_b32 v%d, 2, v%d" % (t0, lane))
    a("v_and_b32 v%d, 3, v%d" % (t0, t0))
    a("v_lshl_add_u32 v%d, v%d, 3, v%d" % (t0, g, t0))
    a("v_lshlrev_b32 v%d, 6, v%d" % (t0, t0))
    a("v_and_b32 v%d, 3, v%d" % (t1, lane))
    a("v_lshl_add_u32 v%d, v%d, 3, v%d" % (t0, t1, t0))
    a("v_and_b32 v%d, 1, v%d" % (t1, g))
    a("v_lshl_add_u32 v%d, v%d, 5, v%d" % (vTA, t1, t0))
    a("v_xor_b32 v%d, 32, v%d" % (vTA + 1, vTA))
    a("v_add_u32 v%d, 0x10000, v%d" % (vTA + 2, vTA))
    a("v_add_u32 v%d, 0x10000, v%d" % (vTA + 3, vTA + 1))
    a("v_lshrrev_b32 v%d, 1, v%d" % (t0, g))
    a("v_lshlrev_b32 v%d, 9, v%d" % (t0, t0))
    a("v_lshl_add_u32 v%d, v%d, 7, v%d" % (t0, t1, t0))
    a("v_lshl_add_u32 v%d, v%d, 3, v%d" % (t0, l15, t0))
    a("v_add_u32 v%d, 0x18000, v%d" % (vTA + 4, t0))
    CS_OFF = 98304 + 16384
    a("v_mov_b32 v%d, 0" % t0)
    a("v_lshlrev_b32 v%d, 2, v%d" % (t1, lane))
    a("s_lshl_b32 s%d, s%d, 8" % (sT0, sWv))
    a("s_add_u32 s%d, s%d, %d" % (sT0, sT0, CS_OFF))
    a("v_add_u32 v%d, s%d, v%d" % (t1, sT0, t1))
    a("ds_write_b32 v%d, v%d" % (t1, t0))
    a("s_waitcnt lgkmcnt(0)")
    a.lg_done = a.lg_issued
    srd(a, sX, px, ox, 2 * MB)
    srd(a, sW, P_W1, 0, 512 * F * 2)
    srd(a, sB, P_B1, 0, F * 2)
    srd(a, sH, P_WS, WS_H, S * F * 2)
    X = V(128)
    WF = V(56)
    vSum, vSq, vCs = V(2, 1), V(2, 1), V(7, 1)
    ACC = 0
    for i in range(2):
        a("v_mov_b32 v%d, 0" % (vSum + i))
        a("v_mov_b32 v%d, 0" % (vSq + i))
    for i in range(7):
        a("v_mov_b32 v%d, 0" % (vCs + i))
    a("s_mul_i32 s%d, s%d, %d" % (sWo, sWv, 16 * LDW))
    a("s_mul_i32 s%d, s%d, 224" % (sT0, sJ))
    a("s_add_u32 s%d, s%d, s%d" % (sWo, sWo, sT0))
    a("s_mul_i32 s%d, s%d, %d" % (sWo2, sWv, 32 * LDW))
    a("s_add_u32 s%d, s%d, s%d" % (sWo2, sWo2, sT0))
    a("s_lshl_b32 s%d, s%d, 10" % (sT2, sWv))
    ctok = []
    for c8 in range(8):
        if c8 % 2 == 0:
            a("s_add_u32 s%d, s%d, %d" % (sT0, sWo2, (c8 // 2) * 128 * LDW + 192))
            a("s_add_u32 m0, s%d, %d" % (sT2, 98304 + (c8 // 2) * 4096))
            a("buffer_load_dwordx4 v%d, s[%d:%d], s%d offen lds" % (vWs, sW, sW + 3, sT0))
        for kind in range(3):
            a("s_add_u32 s%d, s%d, %d" % (sT0, sWo, c8 * 64 * LDW + kind * 64))
            a("s_add_u32 m0, s%d, %d" % (sT2, kind * 32768 + c8 * 4096))
            a("buffer_load_dwordx4 v%d, s[%d:%d], s%d offen lds" % (vWd, sW, sW + 3, sT0))
        tk = None
        for s in (2 * c8, 2 * c8 + 1):
            for tt in range(2):
                tk = XL.load(X + (tt * 16 + s) * 4, tt, s)
        ctok.append(tk)
    BI = V(14, 2)
    vBa = V(1)
    a("v_lshlrev_b32 v%d, 3, v%d" % (vBa, g))
    a("s_mul_i32 s%d, s%d, 224" % (sT1, sJ))

    def tr_reads(s, buf):
        tk = None
        for nt in range(7):
            for p in range(2):
                if nt < 6:
                    kind, c = nt >> 1, nt & 1
                    base = vTA + c + (2 if kind == 2 else 0)
                    off = (kind & 1) * 32768 + s * 2048 + p * 256
                else:
                    base, off = vTA + 4, s * 1024 + p * 256
                tk = a("ds_read_b64_tr_b16 %s, v%d offset:%d" % (vr(WF + buf * 28 + nt * 4 + 2 * p, 2), base, off))
        return tk

    def sync(c8):
        a.wait(ctok[c8])
        a("s_barrier")

    rtok = {}
    sync(0)
    rtok[0] = tr_reads(0, 0)
    for s in range(16):
        buf = s & 1
        if s + 1 < 16:
            if (s + 1) % 2 == 0:
                sync((s + 1) // 2)
            rtok[s + 1] = tr_reads(s + 1, buf ^ 1)
        a.wait(rtok[s])
        fill = []
        for tt in range(2):
            for i in range(4):
                xr = X + (tt * 16 + s) * 4 + i
                fill.append("v_dot2c_f32_bf16 v%d, s%d, v%d" % (vSum + tt, sOnes, xr))
                fill.append("v_dot2c_f32_bf16 v%d, v%d, v%d" % (vSq + tt, xr, xr))
        csfill = []
        for nt in range(7):
            for i in range(4):
                csfill.append("v_dot2c_f32_bf16 v%d, s%d, v%d" % (vCs + nt, sOnes, WF + buf * 28 + nt * 4 + i))
        k = 0
        for nt in range(7):
            for tt in range(2):
                acc = ar(ACC + (tt * 7 + nt) * 4, 4)
                a("%s %s, %s, %s, %s" % (MFMA, acc, vr(WF + buf * 28 + nt * 4, 4), vr(X + (tt * 16 + s) * 4, 4), "0" if s == 0 else acc))
                for _ in range(2):
                    if k < len(fill):
                        a(fill[k])
                        k += 1
        lab = "%s_cs%d" % (name, s)
        a("s_cmp_lg_u32 s%d, %d" % (sWv, s & 3))
        a("s_cbranch_scc1 %s" % lab)
        for c in csfill:
            a(c)
        a("s_nop 3")
        a.label(lab)
        if s == 1:
            btok = None
            for nt in range(7):
                btok = a("buffer_load_dwordx2 %s, v%d, s[%d:%d], s%d offen offset:%d" % (vr(BI + nt * 2, 2), vBa, sB, sB + 3, sT1, nt * 32))
    T = X
    a("s_nop 7")
    a("v_lshlrev_b32 v%d, 2, v%d" % (t0, l15))
    a("v_add_u32 v%d, %d, v%d" % (t0, CS_OFF, t0))
    for nt in range(7):
        a("ds_add_f32 v%d, v%d offset:%d" % (t0, vCs + nt, nt * 64))
    for tt in range(2):
        ln_stats(a, vSum + tt, vSq + tt, T + 0, T + 1, True)
    a.wait_all(vm=False, lg=True)
    a("s_barrier")
    CS = T + 8
    a("v_lshlrev_b32 v%d, 4, v%d" % (t0, g))
    a("v_add_u32 v%d, %d, v%d" % (t0, CS_OFF, t0))
    tk = None
    for nt in range(7):
        tk = a("ds_read_b128 %s, v%d offset:%d" % (vr(CS + nt * 4, 4), t0, nt * 64))
    BFl = T + 40
    a.wait(btok)
    for nt in range(7):
        for i in range(2):
            a("v_lshlrev_b32 v%d, 16, v%d" % (BFl + nt * 4 + 2 * i, BI + nt * 2 + i))
            a("v_and_b32 v%d, 0xffff0000, v%d" % (BFl + nt * 4 + 2 * i + 1, BI + nt * 2 + i))
    a.wait(tk)
    vHa = V(1)
    a("v_lshlrev_b32 v%d, 4, v%d" % (vHa, lane))
    sHo, sHs = sT0, sT1
    a("s_lshr_b32 s%d, s%d, 14" % (sT2, sTT))
    a("s_mul_i32 s%d, s%d, 57344" % (sT2, sT2))
    a("s_lshr_b32 s%d, s%d, 1" % (sHs, sJ))
    a("s_mul_i32 s%d, s%d, 7168" % (sHs, sHs))
    a("s_add_u32 s%d, s%d, s%d" % (sT2, sT2, sHs))
    a("s_and_b32 s%d, s%d, 1" % (sWo, sJ))
    a("s_mul_i32 s%d, s%d, 3072" % (sHo, sWo))
    a("s_add_u32 s%d, s%d, s%d" % (sHo, sHo, sT2))
    a("s_lshl_b32 s%d, s%d, 3" % (sHs, sWo))
    a("s_add_u32 s%d, s%d, s%d" % (sHs, sHs, sT2))
    a("s_add_u32 s%d, s%d, 6144" % (sHs, sHs))
    sC1, sC2 = sWo, sWo2
    c = 0.7978845608028654
    a("s_mov_b32 s%d, %s" % (sC1, f32bits(-2 * c * LOG2E)))
    a("s_mov_b32 s%d, %s" % (sC2, f32bits(-2 * c * LOG2E * 0.044715)))
    U = T + 72
    W = T + 80
    PKD = T + 88
    cnt = 0
    for tt in range(2):
        groups = [(0, 1), (2, 3), (4, 5), (6,)]
        for gi, grp in enumerate(groups):
            n = len(grp) * 4
            for ii, nt in enumerate(grp):
                for r in range(4):
                    u = U + ii * 4 + r
                    a("v_accvgpr_read_b32 v%d, a%d" % (u, ACC + (tt * 7 + nt) * 4 + r))
            for ii, nt in enumerate(grp):
                for r in range(4):
                    u = U + ii * 4 + r
                    a("v_fma_f32 v%d, v%d, v%d, v%d" % (u, u, vSq + tt, BFl + nt * 4 + r))
                    a("v_fmac_f32 v%d, v%d, v%d" % (u, vSum + tt, CS + nt * 4 + r))
            for i in range(n):
                a("v_mul_f32 v%d, v%d, v%d" % (W + i, U + i, U + i))
                a("v_fma_f32 v%d, v%d, s%d, s%d" % (W + i, W + i, sC2, sC1)) if False else None
                a("v_mul_f32 v%d, s%d, v%d" % (W + i, sC2, W + i))
                a("v_add_f32 v%d, s%d, v%d" % (W + i, sC1, W + i))
                a("v_mul_f32 v%d, v%d, v%d" % (W + i, W + i, U + i))
            for i in range(n):
                a("v_exp_f32 v%d, v%d" % (W + i, W + i))
            for i in range(n):
                a("v_add_f32 v%d, 1.0, v%d" % (W + i, W + i))
            for i in range(n):
                a("v_rcp_f32 v%d, v%d" % (W + i, W + i))
            for i in range(n):
                a("v_mul_f32 v%d, v%d, v%d" % (U + i, U + i, W + i))
            pk = PKD + (cnt & 1) * 4
            cnt += 1
            for i in range(n // 2):
                a("v_cvt_pk_bf16_f32 v%d, v%d, v%d" % (pk + i, U + 2 * i, U + 2 * i + 1))
            if tt == 1 and gi == 0:
                a("s_add_u32 s%d, s%d, 57344" % (sHo, sHo))
                a("s_add_u32 s%d, s%d, 57344" % (sHs, sHs))
            if len(grp) == 2:
                a("buffer_store_dwordx4 %s, v%d, s[%d:%d], s%d offen offset:%d" % (vr(pk, 4), vHa, sH, sH + 3, sHo, gi * 1024))
            else:
                a("buffer_store_dwordx2 %s, v%d, s[%d:%d], s%d offen" % (vr(pk, 2), vHa, sH, sH + 3, sHs))
    epilogue(a, name)
    return a.text(), descriptor(name, V.next, 56), (256, 256, CS_OFF + 1024)


def h_frow(ks, p, g, rr):
    j2, i = divmod(ks, 7)
    if i < 6:
        jj = 2 * j2 + (i // 3)
        pi = i % 3
        nt = 2 * pi + p
        return jj * 112 + nt * 16 + 4 * g + rr
    jj = 2 * j2 + p
    return jj * 112 + 96 + 4 * g + rr


def kernel_D(name, xin, xout):
    a = Asm()
    V = RegAlloc(1, 256)
    prologue(a, name, 256)
    sW, sHh, sB, sXi, sXo = 40, 44, 48, 52, 56
    sRB, sCB, sWv, sT0, sT1, sT2, sXiO, sXoO, sHo = 60, 61, 62, 63, 64, 65, 66, 67, 68
    lane = V(1)
    a("v_and_b32 v%d, 63, v0" % lane)
    a("v_lshrrev_b32 v0, 6, v0")
    a("v_readfirstlane_b32 s%d, v0" % sWv)
    ids_64(a, sRB, sCB, sT0)
    g, l15 = V(1), V(1)
    a("v_lshrrev_b32 v%d, 4, v%d" % (g, lane))
    a("v_and_b32 v%d, 15, v%d" % (l15, lane))
    vWd, vT, sLdsW = w64_setup(a, V, lane, g, sWv)
    pi, oi, li = xbuf(xin)
    po, oo, lo = xbuf(xout)
    vXi, xi_offs = xaddr_epilogue(a, V, lane, sWv, sRB, sCB, li, sXiO, sT0)
    vXs, xs_offs = xaddr_epilogue(a, V, lane, sWv, sRB, sCB, lo, sXoO, sT0)
    vHa = V(1)
    a("v_lshlrev_b32 v%d, 4, v%d" % (vHa, lane))
    vBa = V(1)
    a("v_and_b32 v%d, 3, v%d" % (vBa, lane))
    a("v_lshlrev_b32 v%d, 5, v%d" % (vBa, vBa))
    a("s_waitcnt lgkmcnt(0)")
    srd(a, sW, P_W2, 0, F * 512 * 2)
    srd(a, sHh, P_WS, WS_H, S * F * 2)
    srd(a, sB, P_B2, 0, 1024)
    srd(a, sXi, pi, oi, 2 * MB)
    srd(a, sXo, po, oo, 2 * MB)
    NS = 14
    PF = 7
    NSLOT = 10
    HB, ACC = 0, 128
    WF = V(32)
    XO, BI = V(8), V(8)
    a("s_mul_i32 s%d, s%d, %d" % (sHo, sRB, 4 * 57344))
    a("s_mul_i32 s%d, s%d, %d" % (sT0, sWv, 14 * 1024))
    a("s_add_u32 s%d, s%d, s%d" % (sHo, sHo, sT0))
    sWo = 72
    a("s_mul_i32 s%d, s%d, %d" % (sWo, sWv, 448 * 1024))
    a("s_lshl_b32 s%d, s%d, 7" % (sT0, sCB))
    a("s_add_u32 s%d, s%d, s%d" % (sWo, sWo, sT0))
    toks = {}

    def issue(s):
        slot = s % NSLOT
        for i in range(4):
            r0 = h_frow(s, i >> 1, (i & 1) * 2, 0)
            a("s_add_u32 s%d, s%d, %d" % (sT0, sWo, r0 * 1024))
            a("s_add_u32 m0, s%d, %d" % (sLdsW, slot * 4096 + i * 1024))
            a("buffer_load_dwordx4 v%d, s[%d:%d], s%d offen lds" % (vWd, sW, sW + 3, sT0))
        k = None
        for tt in range(4):
            a("s_add_u32 s%d, s%d, %d" % (sT0, sHo, tt * 57344 + s * 1024))
            k = a("buffer_load_dwordx4 %s, v%d, s[%d:%d], s%d offen" % (ar(HB + (s % 8) * 16 + tt * 4, 4), vHa, sHh, sHh + 3, sT0))
        toks[s] = k

    def tr_reads(s, buf):
        tk = None
        for nt in range(4):
            for p in range(2):
                tk = a("ds_read_b64_tr_b16 %s, v%d offset:%d" % (vr(WF + buf * 16 + nt * 4 + 2 * p, 2), vT + nt, (s % NSLOT) * 4096 + p * 2048))
        return tk

    for s in range(PF):
        issue(s)
    a("s_lshl_b32 s%d, s%d, 7" % (sT1, sCB))
    a("buffer_load_dwordx4 %s, v%d, s[%d:%d], s%d offen offset:%d" % (vr(XO, 4), vXi, sXi, sXi + 3, sXiO, xi_offs[0]))
    a("buffer_load_dwordx4 %s, v%d, s[%d:%d], s%d offen offset:%d" % (vr(XO + 4, 4), vXi, sXi, sXi + 3, sXiO, xi_offs[1]))
    a("buffer_load_dwordx4 %s, v%d, s[%d:%d], s%d offen" % (vr(BI, 4), vBa, sB, sB + 3, sT1))
    xtok = a("buffer_load_dwordx4 %s, v%d, s[%d:%d], s%d offen offset:16" % (vr(BI + 4, 4), vBa, sB, sB + 3, sT1))
    rtok = {}
    a.wait(toks[0])
    rtok[0] = tr_reads(0, 0)
    for s in range(NS):
        buf = s & 1
        if s + 1 < NS:
            a.wait(toks[s + 1])
            rtok[s + 1] = tr_reads(s + 1, buf ^ 1)
        a.wait(rtok[s])
        for nt in range(4):
            for tt in range(4):
                acc = ar(ACC + (tt * 4 + nt) * 4, 4)
                a("%s %s, %s, %s, %s" % (MFMA, acc, vr(WF + buf * 16 + nt * 4, 4), ar(HB + (s % 8) * 16 + tt * 4, 4), "0" if s == 0 else acc))
        if s + PF < NS:
            issue(s + PF)
    reduce_epilogue(a, V, lane, g, l15, sWv, sLdsW, ACC, XO, BI, vXi, None, None, vXs, (sXo, sXoO), xs_offs, sT0, xtok)
    epilogue(a, name)
    return a.text(), descriptor(name, V.next, 192), (256, 256, 4 * WAVE_LDS)


XLAY = "frag"

HEADER = open("interleave_layers__linear_kernel_hedgehog__mixer_channel_mlp__prompt.s.ref").read().split("; Override")[0]


def build(extra_dummy=0):
    ks = [
        ("zero_kernel", kernel_Z("zero_kernel")),
        ("a0_kernel", kernel_A("a0_kernel", 0, "row")),
        ("b0_kernel", kernel_B("b0_kernel", 0, "ax", "x1")),
        ("c0_kernel", kernel_C("c0_kernel", "x1")),
        ("d0_kernel", kernel_D("d0_kernel", "x1", "x2")),
        ("a1_kernel", kernel_A("a1_kernel", 1, XLAY)),
        ("b1_kernel", kernel_B("b1_kernel", 1, "x2", "x3")),
        ("c1_kernel", kernel_C("c1_kernel", "x3")),
        ("d1_kernel", kernel_D("d1_kernel", "x3", "out")),
    ]
    out = HEADER
    for n, (t, d, (gx, bx, lds)) in ks:
        out += "; @launch kernel=%s grid=(%d,1,1) block=(%d,1,1) lds=%d\n" % (n, gx, bx, lds)
    for i in range(extra_dummy):
        out += "; @launch kernel=zero_kernel grid=(34,1,1) block=(256,1,1) lds=0\n"
    out += '.amdgcn_target "amdgcn-amd-amdhsa--gfx950"\n.text\n'
    for n, (t, d, l) in ks:
        out += t
    out += '.section .rodata,"a"\n.p2align 6\n'
    for n, (t, d, l) in ks:
        out += ".p2align 6\n" + d
    return out


if __name__ == "__main__":
    path = sys.argv[1] if len(sys.argv) > 1 else "interleave_layers__linear_kernel_hedgehog__mixer_channel_mlp__prompt.s"
    nd = int(sys.argv[2]) if len(sys.argv) > 2 else 0
    open(path, "w").write(build(nd))
    print("wrote", path)
```
